```python
import torch

def _softmax(x, axis=-1):
    return torch.softmax(x, dim=axis)
def _gelu(x):
    return torch.nn.functional.gelu(x, approximate="tanh")
def _silu(x):
    return torch.nn.functional.silu(x)
def _sigmoid(x):
    return torch.sigmoid(x)
def _layernorm(x, axis=-1, eps=1e-5):
    m = x.mean(dim=axis, keepdim=True)
    v = x.var(dim=axis, keepdim=True, unbiased=False)
    return (x - m) / torch.sqrt(v + eps)
def _scatter_add(tgt, idx, src, axis=0):
    return tgt.clone().index_add_(axis, idx, src)
def _segment_sum(src, seg, n):
    out = torch.zeros((n,) + src.shape[1:], dtype=src.dtype)
    return out.index_add_(0, seg, src)
def _pad(x, pw):
    flat = tuple(v for pair in reversed(pw) for v in pair)
    return torch.nn.functional.pad(x, flat)

kernel_name = 'parallel_sum__linear_kernel_hedgehog__glu_gated_glu__prompt'

def setup_inputs():

    _w = (lambda a: (lambda t: t.to(torch.bfloat16) if t.is_floating_point() else t)(torch.as_tensor(a)))
    def _A_setup():
        B, S, D, H = 1, 2048, 1024, 32
        Dh = D // H
        return {
            "x": _w((lambda *s: torch.randn(*s, dtype=torch.bfloat16) * 0.05)(B, S, D)),
            "wqkv": _w((lambda *s: torch.randn(*s, dtype=torch.bfloat16) * 0.4)(D, 3 * D)),
            "w_phi": _w((lambda *s: torch.randn(*s, dtype=torch.bfloat16) * 0.4)(H, Dh, Dh) * (Dh ** -0.5)),
            "wo": _w((lambda *s: torch.randn(*s, dtype=torch.bfloat16) * 0.1)(D, D)),
        }
    _A_in = _A_setup()

    def _B_setup():
        B, S, D, F = 1, 2048, 1024, 3584
        return {
            "x": _w((lambda *s: torch.randn(*s, dtype=torch.bfloat16) * 0.05)(B, S, D)),
            "w_gate": _w((lambda *s: torch.randn(*s, dtype=torch.bfloat16) * 0.05)(D, F)),
            "w_up": _w((lambda *s: torch.randn(*s, dtype=torch.bfloat16) * 0.05)(D, F)),
            "w_down": _w((lambda *s: torch.randn(*s, dtype=torch.bfloat16) * 0.05)(F, D)),
        }
    _B_in = _B_setup()

    return {
        "A_x": _A_in["x"],
        "A_wqkv": _A_in["wqkv"],
        "A_w_phi": _A_in["w_phi"],
        "A_wo": _A_in["wo"],
        "B_x": _B_in["x"],
        "B_w_gate": _B_in["w_gate"],
        "B_w_up": _B_in["w_up"],
        "B_w_down": _B_in["w_down"],
    }

def reference(A_x, A_wqkv, A_w_phi, A_wo, B_x, B_w_gate, B_w_up, B_w_down):
    def _A_ref(x, wqkv, w_phi, wo):
        B, S, D = x.shape
        H = 32; Dh = D // H
        qkv = (lambda x, *d: x.permute(*d))((x @ wqkv).reshape(B, S, 3, H, Dh), 2, 0, 3, 1, 4)
        q, k, v = qkv[0], qkv[1], qkv[2]
        pq = torch.einsum("bhsd,hdf->bhsf", q, w_phi)
        pk = torch.einsum("bhsd,hdf->bhsf", k, w_phi)
        phi_q = torch.concatenate([_softmax(pq, axis=-1), _softmax(-pq, axis=-1)], axis=-1)
        phi_k = torch.concatenate([_softmax(pk, axis=-1), _softmax(-pk, axis=-1)], axis=-1)
        kv = torch.einsum("bhsf,bhsd->bhfd", phi_k, v)
        z  = torch.einsum("bhsf->bhf", phi_k)
        num = torch.einsum("bhqf,bhfd->bhqd", phi_q, kv)
        den = torch.einsum("bhqf,bhf->bhq", phi_q, z)[..., None] + 1e-6
        o = num / den
        return (lambda x, *d: x.permute(*d))(o, 0, 2, 1, 3).reshape(B, S, D) @ wo

    def _B_ref(x, w_gate, w_up, w_down):
        g = torch.einsum("bsd,df->bsf", x, w_gate)
        u = torch.einsum("bsd,df->bsf", x, w_up)
        h = _sigmoid(g) * u
        return torch.einsum("bsf,fd->bsd", h, w_down)

    x = A_x
    xn = _layernorm(x, axis=-1)
    return x + _A_ref(xn, A_wqkv, A_w_phi, A_wo) + _B_ref(xn, B_w_gate, B_w_up, B_w_down)
```

```python
import re

TRANS = ("v_exp_f32", "v_log_f32", "v_rcp_f32", "v_rsq_f32", "v_sqrt_f32", "v_sin_f32", "v_cos_f32")

def _regs(tok):
    tok = tok.strip()
    tok = re.sub(r"^-", "", tok)
    m = re.match(r"^abs\((.*)\)$", tok)
    if m: tok = m.group(1)
    m = re.match(r"^\|(.*)\|$", tok)
    if m: tok = m.group(1)
    m = re.match(r"^([vas])(\d+)$", tok)
    if m: return {(m.group(1), int(m.group(2)))}
    m = re.match(r"^([vas])\[(\d+):(\d+)\]$", tok)
    if m: return {(m.group(1), i) for i in range(int(m.group(2)), int(m.group(3)) + 1)}
    if tok in ("vcc", "vcc_lo", "vcc_hi"): return {("vcc", 0)}
    if tok == "m0": return {("m0", 0)}
    if tok in ("exec", "exec_lo", "exec_hi"): return {("exec", 0)}
    return set()

class Ins:
    __slots__ = ("text", "op", "dst", "src", "kind", "states", "srcC", "passes", "stdata", "dpp", "ldsdma")
    def __init__(self, text):
        self.text = text
        t = text.split(";")[0].strip()
        parts = t.split(None, 1)
        self.op = parts[0]
        rest = parts[1] if len(parts) > 1 else ""
        ops = [o.strip() for o in rest.split(",")] if rest else []
        clean = []
        mods = ""
        for o in ops:
            w = o.split()
            if w:
                clean.append(w[0]); mods += " " + " ".join(w[1:])
        ops = clean
        self.dst = set(); self.src = set(); self.kind = "other"; self.states = 1
        self.srcC = set(); self.passes = 0; self.stdata = set(); self.dpp = ("row_" in mods or "quad_perm" in mods or "wave_" in mods)
        self.ldsdma = False
        op = self.op
        R = [_regs(o) for o in ops]
        if op == "s_nop":
            self.kind = "nop"; self.states = int(ops[0], 0) + 1
        elif op.startswith("v_mfma"):
            self.kind = "mfma"; self.dst = R[0]; self.src = R[1] | R[2]; self.srcC = R[3]
            self.passes = 8 if "32x32" in op else 4
        elif op.startswith("v_cmp"):
            self.kind = "valu"; self.dst = R[0]; self.src = set().union(*R[1:])
        elif op.startswith("v_permlane") and "swap" in op:
            self.kind = "valu"; self.dst = R[0] | R[1]; self.src = R[0] | R[1]
        elif op.startswith("v_"):
            self.kind = "valu"
            nd = 1
            if op.startswith(("v_add_co", "v_sub_co", "v_addc_co", "v_subb_co", "v_subrev_co")): nd = 2
            for r in R[:nd]: self.dst |= r
            for r in R[nd:]: self.src |= r
            if op.startswith(("v_fmac", "v_pk_fmac", "v_writelane")): self.src |= R[0]
            if op.startswith("v_cndmask") and len(R) == 3: self.src |= {("vcc", 0)}
        elif op.startswith(("buffer_load", "global_load")):
            self.kind = "vmem"
            if " lds" in mods or "_lds_" in op:
                self.ldsdma = True
                for r in R: self.src |= r
                self.src |= {("m0", 0)}
            else:
                self.dst = R[0]
                for r in R[1:]: self.src |= r
        elif op.startswith(("buffer_store", "buffer_atomic")):
            self.kind = "vmem"
            for r in R: self.src |= r
            if "x3" in op or "x4" in op: self.stdata = R[0]
            if op.startswith("buffer_atomic") and "sc0" in mods: self.dst = R[0]
        elif op.startswith(("global_store", "global_atomic")):
            self.kind = "vmem"
            for r in R: self.src |= r
            if "x3" in op or "x4" in op: self.stdata = R[1]
        elif op.startswith("ds_read") or op.startswith(("ds_bpermute", "ds_permute", "ds_swizzle")):
            self.kind = "ds"; self.dst = R[0]
            for r in R[1:]: self.src |= r
        elif op.startswith("ds_"):
            self.kind = "ds"
            for r in R: self.src |= r
        elif op.startswith("s_"):
            self.kind = "salu"
            if op.startswith(("s_cmp", "s_cbranch", "s_branch", "s_waitcnt", "s_barrier", "s_endpgm", "s_setprio", "s_sleep", "s_bitcmp")):
                for r in R: self.src |= r
            else:
                if R: self.dst = R[0]
                for r in R[1:]: self.src |= r

def need(p, c):
    n = 0
    pv = {r for r in p.dst if r[0] in "va"}
    ps = {r for r in p.dst if r[0] in ("s", "vcc")}
    if p.kind == "valu":
        if c.kind == "mfma" and pv & (c.src | c.srcC): n = max(n, 2)
        if c.kind == "valu":
            if p.op in TRANS and pv & c.src: n = max(n, 1)
            if (c.op.startswith("v_permlane") or c.dpp) and pv & c.src: n = max(n, 2)
            if c.op.startswith(("v_readlane", "v_readfirstlane")) and pv & c.src: n = max(n, 1)
            if ps & c.src: n = max(n, 4 if c.op.startswith(("v_readlane", "v_writelane")) else 2)
        if p.op in TRANS and c.kind in ("vmem", "ds") and pv & c.src: n = max(n, 1)
        if c.kind == "vmem" and ps & c.src: n = max(n, 5)
        if c.kind == "salu" and ps & c.src: n = max(n, 1)
    if p.kind == "mfma":
        big = {4: 8, 8: 12}[p.passes]; mid = {4: 6, 8: 10}[p.passes]; war = {4: 3, 8: 7}[p.passes]
        if c.kind == "mfma":
            if pv & c.src: n = max(n, big)
            if pv & c.srcC and not (c.srcC == pv and c.passes == p.passes): n = max(n, mid)
            if pv & c.dst and not (c.srcC == pv): n = max(n, big)
        elif c.kind in ("valu", "vmem", "ds"):
            if pv & (c.src | c.dst): n = max(n, big)
            if c.kind == "valu" and p.srcC & c.dst: n = max(n, war)
    if p.kind == "vmem" and p.stdata:
        if p.stdata & c.dst: n = max(n, 2 if c.kind == "valu" else 1)
    if p.kind == "salu" and ("m0", 0) in p.dst:
        if c.ldsdma or (c.kind == "valu" and ("m0", 0) in c.src): n = max(n, 1)
    return n

class Asm:
    def __init__(self): self.L = []
    def __call__(self, s):
        for ln in s.split("\n"):
            ln = ln.strip()
            if ln: self.L.append(ln)
    def comment(self, s): self.L.append("; " + s)
    def finish(self):
        out = []; hist = []
        nins = 0
        for ln in self.L:
            if ln.startswith((";", ".")) or ln.endswith(":"):
                out.append(ln); continue
            c = Ins(ln)
            req = 0; dist = 0
            for p in reversed(hist):
                n = need(p, c)
                if n > dist: req = max(req, n - dist)
                dist += p.states
                if dist >= 16: break
            if req:
                nop = Ins(f"s_nop {req-1}")
                out.append("    " + nop.text); hist.append(nop); nins += 1
            out.append("    " + ln); hist.append(c)
            if len(hist) > 40: del hist[:20]
        return out
```

```python
import sys
from asmlib import Asm
NAME = "parallel_sum__linear_kernel_hedgehog__glu_gated_glu__prompt"
WS_XN = 0x0000000
WS_HA = 0x0800000
WS_PQ = 0x2000000
WS_KV = 0x3000000
WS_ST = 0x4000000
HA_MT = 144 * 8192
PQ = 6144; PG = 7168
LOG2E = 0x3fb8aa3b
NLOG2E = 0xbfb8aa3b

def kd(name, nv, ns=102):
    return (f'.section .rodata,"a"\n.p2align 6\n.amdhsa_kernel {name}\n'
            f"  .amdhsa_next_free_vgpr {nv}\n  .amdhsa_next_free_sgpr {ns}\n  .amdhsa_accum_offset {min(256,(nv+3)//4*4)}\n"
            "  .amdhsa_group_segment_fixed_size 0\n  .amdhsa_kernarg_size 88\n  .amdhsa_user_sgpr_count 2\n"
            "  .amdhsa_user_sgpr_kernarg_segment_ptr 1\n  .amdhsa_system_sgpr_workgroup_id_x 1\n.end_amdhsa_kernel\n.text\n")

def head(A, name):
    A(f".globl {name}\n.p2align 8\n.type {name},@function\n{name}:")

def srd(A, s, lo, hi, size):
    A(f"s_mov_b32 s{s}, s{lo}\ns_and_b32 s{s+1}, s{hi}, 0xffff\ns_mov_b32 s{s+2}, {size}\ns_mov_b32 s{s+3}, 0x20000")

def rnd_pair(A, a, b, t):
    A(f"v_cvt_pk_bf16_f32 v{t}, v{a}, v{b}\nv_lshlrev_b32 v{a}, 16, v{t}\nv_and_b32 v{b}, 0xffff0000, v{t}")

def stamp(A, prof, s):
    if prof: A(f"s_memtime s[{s}:{s+1}]\ns_memrealtime s[{s+2}:{s+3}]")

def stamp_store(A, prof, kidx, sws, sW, regs, vt):
    if not prof: return
    A("s_waitcnt lgkmcnt(0)")
    n = len(regs)
    for i, s in enumerate(regs):
        A(f"v_mov_b32 v{vt+2*i}, s{s}\nv_mov_b32 v{vt+2*i+1}, s{s+2}")
    A(f"s_lshl_b32 s4, s2, 8\ns_lshl_b32 s5, s{sW}, 5\ns_add_u32 s4, s4, s5\ns_add_u32 s4, s4, {WS_ST + kidx*0x100000}")
    A(f"v_mov_b32 v{vt+8}, 0\ns_mov_b64 exec, 1")
    A(f"buffer_store_dwordx4 v[{vt}:{vt+3}], v{vt+8}, s[{sws}:{sws+3}], s4 offen")
    A(f"buffer_store_dwordx4 v[{vt+4}:{vt+7}], v{vt+8}, s[{sws}:{sws+3}], s4 offen offset:16")
    A("s_mov_b64 exec, -1")

def gen_ln(prof=False):
    A = Asm(); name = "ln_kernel"; head(A, name)
    A("s_cmp_ge_u32 s2, 256\ns_cbranch_scc1 LN_done")
    stamp(A, prof, 40)
    A("s_load_dwordx2 s[4:5], s[0:1], 0\ns_load_dwordx2 s[6:7], s[0:1], 80")
    A("v_and_b32 v1, 63, v0\nv_lshrrev_b32 v2, 6, v0")
    A("v_and_b32 v3, 7, v1\nv_lshrrev_b32 v4, 3, v1")
    A("v_readfirstlane_b32 s3, v2")
    A("v_lshlrev_b32 v5, 11, v3\nv_lshl_add_u32 v5, v2, 9, v5\nv_lshl_add_u32 v5, v4, 4, v5")
    A("s_lshl_b32 s16, s2, 14")
    A("s_waitcnt lgkmcnt(0)")
    srd(A, 8, 4, 5, 0x400000); srd(A, 12, 6, 7, 0x10000000)
    for i in range(4): A(f"buffer_load_dwordx4 v[{8+4*i}:{11+4*i}], v5, s[8:11], s16 offen offset:{128*i}")
    A("v_lshrrev_b32 v6, 2, v4\nv_lshl_add_u32 v6, v2, 3, v6\nv_lshlrev_b32 v6, 14, v6")
    A("v_and_b32 v7, 3, v4\nv_lshl_add_u32 v6, v7, 8, v6\nv_lshl_add_u32 v6, v3, 4, v6")
    A("s_lshr_b32 s17, s2, 5\ns_lshl_b32 s17, s17, 19\ns_lshr_b32 s18, s2, 1\ns_and_b32 s18, s18, 15\ns_lshl_b32 s18, s18, 10\ns_add_u32 s17, s17, s18")
    A("s_and_b32 s18, s2, 1\ns_lshl_b32 s18, s18, 7\ns_add_u32 s17, s17, s18")
    A(f"s_add_u32 s17, s17, {WS_XN}")
    A("s_add_u32 s18, s17, 32768\ns_add_u32 s19, s17, 65536\ns_add_u32 s20, s17, 98304")
    A("v_lshlrev_b32 v7, 4, v3\nv_lshl_add_u32 v56, v2, 2, v7")
    X = 24
    for i in range(4):
        A(f"s_waitcnt vmcnt({3-i})")
        for d in range(4):
            r = 8 + 4 * i + d; o = X + 8 * i + 2 * d
            A(f"v_lshlrev_b32 v{o}, 16, v{r}\nv_and_b32 v{o+1}, 0xffff0000, v{r}")
    def reduce(v, ldsoff):
        A(f"v_add_f32_dpp v{v}, v{v}, v{v} row_ror:8 row_mask:0xf bank_mask:0xf")
        A(f"v_mov_b32 v58, v{v}\nv_permlane16_swap_b32 v{v}, v58\nv_add_f32 v{v}, v{v}, v58")
        A(f"v_mov_b32 v58, v{v}\nv_permlane32_swap_b32 v{v}, v58\nv_add_f32 v{v}, v{v}, v58")
        A(f"ds_write_b32 v56, v{v} offset:{ldsoff}\ns_waitcnt lgkmcnt(0)\ns_barrier")
        A(f"ds_read_b128 v[60:63], v7 offset:{ldsoff}\ns_waitcnt lgkmcnt(0)")
        A(f"v_add_f32 v60, v60, v61\nv_add_f32 v62, v62, v63\nv_add_f32 v{v}, v60, v62")
        A(f"v_mul_f32 v{v}, 0x3a800000, v{v}")
    for ch in range(4):
        A(f"v_add_f32 v{64+ch}, v{X+8*ch}, v{X+8*ch+1}")
    for k in range(2, 8):
        for ch in range(4): A(f"v_add_f32 v{64+ch}, v{64+ch}, v{X+8*ch+k}")
    A("v_add_f32 v64, v64, v65\nv_add_f32 v66, v66, v67\nv_add_f32 v57, v64, v66")
    reduce(57, 0)
    for ch in range(4): A(f"v_mov_b32 v{64+ch}, 0")
    for k in range(8):
        for ch in range(4):
            A(f"v_sub_f32 v{68+ch}, v{X+8*ch+k}, v57")
        for ch in range(4):
            A(f"v_fmac_f32 v{64+ch}, v{68+ch}, v{68+ch}")
    A("v_add_f32 v64, v64, v65\nv_add_f32 v66, v66, v67\nv_add_f32 v59, v64, v66")
    reduce(59, 128)
    rnd_pair(A, 57, 59, 58)
    A("v_add_f32 v59, 0x3727c5ac, v59")
    A("v_cvt_pk_bf16_f32 v58, v59, v59\nv_lshlrev_b32 v59, 16, v58")
    A("v_sqrt_f32 v59, v59")
    A("v_cvt_pk_bf16_f32 v58, v59, v59\nv_lshlrev_b32 v59, 16, v58")
    A("v_rcp_f32 v60, v59")
    A("v_fma_f32 v61, -v59, v60, 1.0\nv_fma_f32 v60, v60, v61, v60")
    for i in range(4):
        for d in range(4):
            a = X + 8 * i + 2 * d
            A(f"v_sub_f32 v{a}, v{a}, v57\nv_sub_f32 v{a+1}, v{a+1}, v57")
        for d in range(4):
            a = X + 8 * i + 2 * d
            rnd_pair(A, a, a + 1, 64 + d)
        for d in range(4):
            a = X + 8 * i + 2 * d
            A(f"v_mul_f32 v{a}, v{a}, v60\nv_mul_f32 v{a+1}, v{a+1}, v60")
        for d in range(4):
            a = X + 8 * i + 2 * d
            A(f"v_cvt_pk_bf16_f32 v{8+4*i+d}, v{a}, v{a+1}")
        A(f"buffer_store_dwordx4 v[{8+4*i}:{11+4*i}], v6, s[12:15], s{17+i} offen")
    stamp(A, prof, 44)
    stamp_store(A, prof, 0, 12, 3, [40, 44], 64)
    A("LN_done:\ns_endpgm")
    return A.finish(), kd(name, 80, 48 if not prof else 64), f"; @launch kernel={name} grid=(256,1,1) block=(256,1,1) lds=256"

def phi_block(A, aq0, aq1, wphi, T, sL):
    B = T
    P = T + 4
    En = T + 12
    t0, t1, t2, t3 = T + 20, T + 21, T + 22, T + 23
    O = T + 24
    A(f"v_cvt_pk_bf16_f32 v{B}, v{aq0}, v{aq0+1}\nv_cvt_pk_bf16_f32 v{B+1}, v{aq0+2}, v{aq0+3}")
    A(f"v_cvt_pk_bf16_f32 v{B+2}, v{aq1}, v{aq1+1}\nv_cvt_pk_bf16_f32 v{B+3}, v{aq1+2}, v{aq1+3}")
    for fb in range(2):
        A(f"v_mfma_f32_16x16x32_bf16 v[{P+4*fb}:{P+4*fb+3}], v[{wphi+4*fb}:{wphi+4*fb+3}], v[{B}:{B+3}], 0")
    return B, P, En, (t0, t1, t2, t3), O

def phi_finish(A, regs, sL):
    B, P, En, (t0, t1, t2, t3), O = regs
    for i in range(4): rnd_pair(A, P + 2 * i, P + 2 * i + 1, B + i)
    A(f"v_max3_f32 v{t0}, v{P}, v{P+1}, v{P+2}\nv_min3_f32 v{t1}, v{P}, v{P+1}, v{P+2}")
    A(f"v_max3_f32 v{t0}, v{t0}, v{P+3}, v{P+4}\nv_min3_f32 v{t1}, v{t1}, v{P+3}, v{P+4}")
    A(f"v_max3_f32 v{t0}, v{t0}, v{P+5}, v{P+6}\nv_min3_f32 v{t1}, v{t1}, v{P+5}, v{P+6}")
    A(f"v_max_f32 v{t0}, v{t0}, v{P+7}\nv_min_f32 v{t1}, v{t1}, v{P+7}")
    A(f"v_xor_b32 v{t1}, 0x80000000, v{t1}")
    def xred(op):
        A(f"v_permlane16_swap_b32 v{t0}, v{t1}\n{op} v{t0}, v{t0}, v{t1}\nv_mov_b32 v{t1}, v{t0}")
        A(f"v_permlane32_swap_b32 v{t0}, v{t1}\n{op} v{t0}, v{t0}, v{t1}\nv_mov_b32 v{t1}, v{t0}")
        A(f"v_permlane16_swap_b32 v{t0}, v{t1}")
    xred("v_max_f32")
    A(f"v_mul_f32 v{t2}, s{sL}, v{t0}\nv_mul_f32 v{t3}, s{sL}, v{t1}")
    for i in range(8):
        A(f"v_fma_f32 v{En+i}, -v{P+i}, s{sL}, -v{t3}")
        A(f"v_fma_f32 v{P+i}, v{P+i}, s{sL}, -v{t2}")
    for i in range(8):
        A(f"v_exp_f32 v{P+i}, v{P+i}\nv_exp_f32 v{En+i}, v{En+i}")
    A(f"v_add_f32 v{t0}, v{P}, v{P+1}\nv_add_f32 v{t1}, v{En}, v{En+1}")
    A(f"v_add_f32 v{t2}, v{P+2}, v{P+3}\nv_add_f32 v{t3}, v{En+2}, v{En+3}")
    A(f"v_add_f32 v{t0}, v{t0}, v{P+4}\nv_add_f32 v{t1}, v{t1}, v{En+4}")
    A(f"v_add_f32 v{t2}, v{t2}, v{P+5}\nv_add_f32 v{t3}, v{t3}, v{En+5}")
    A(f"v_add_f32 v{t0}, v{t0}, v{P+6}\nv_add_f32 v{t1}, v{t1}, v{En+6}")
    A(f"v_add_f32 v{t2}, v{t2}, v{P+7}\nv_add_f32 v{t3}, v{t3}, v{En+7}")
    A(f"v_add_f32 v{t0}, v{t0}, v{t2}\nv_add_f32 v{t1}, v{t1}, v{t3}")
    xred("v_add_f32")
    A(f"v_rcp_f32 v{t0}, v{t0}\nv_rcp_f32 v{t1}, v{t1}")
    for i in range(8):
        A(f"v_mul_f32 v{P+i}, v{P+i}, v{t0}\nv_mul_f32 v{En+i}, v{En+i}, v{t1}")
    for i in range(4):
        A(f"v_cvt_pk_bf16_f32 v{O+i}, v{P+2*i}, v{P+2*i+1}\nv_cvt_pk_bf16_f32 v{O+4+i}, v{En+2*i}, v{En+2*i+1}")

def glu(A, G, U, O, T, mimic=True):
    n = len(G)
    if mimic:
        for i in range(0, n, 2): rnd_pair(A, G[i], G[i + 1], T + i // 2)
    for i in range(n): A(f"v_mul_f32 v{G[i]}, 0x{NLOG2E:x}, v{G[i]}")
    for i in range(n): A(f"v_exp_f32 v{G[i]}, v{G[i]}")
    if mimic:
        for i in range(0, n, 2): rnd_pair(A, U[i], U[i + 1], T + i // 2)
    for i in range(n): A(f"v_add_f32 v{G[i]}, 1.0, v{G[i]}")
    for i in range(n): A(f"v_rcp_f32 v{G[i]}, v{G[i]}")
    if mimic:
        for i in range(0, n, 2): rnd_pair(A, G[i], G[i + 1], T + i // 2)
    for i in range(n): A(f"v_mul_f32 v{G[i]}, v{G[i]}, v{U[i]}")
    for i in range(0, n, 2): A(f"v_cvt_pk_bf16_f32 v{O[i//2]}, v{G[i]}, v{G[i+1]}")

XRING = 0; WRING = 65536; XS = 16384; WSL = 20480

def gen_g1(D=3, prof=False, mimic=True):
    A = Asm(); name = "g1_kernel"; head(A, name)
    nw = 8; mt = 4; VACC = 96
    def acc(j, m): return VACC + 4 * (mt * j + m)
    def accs(j, m): a = acc(j, m); return f"v[{a}:{a+3}]"
    vXa = 1; vWn = [[2, 3], [4, 5]]; vW4 = [[6, 7], [8, 9]]; vXo = 10; vWo = [11, 12, 13, 14, 15]
    XF = 24; WF = XF + 2 * mt * 4; WPHI = 72; WPT = 80
    assert WF + 4 * (D + 1) <= WPHI
    sW = 3; sXsrd = 8; sWsrd = [12, 16, 20, 24, 28]; sWoff = [32, 33, 34, 35, 36]; sWstr = [37, 38, 39, 40, 41]
    sXoff = 42; sM0X = 43; sM0W = 44; sCnt = 60; sWS = 64; sPH = 92
    A("s_cmp_ge_u32 s2, 256\ns_cbranch_scc1 G1_done")
    stamp(A, prof, 80)
    A("s_load_dwordx4 s[68:71], s[0:1], 8")
    A("s_load_dwordx4 s[72:75], s[0:1], 40")
    A("s_load_dwordx2 s[76:77], s[0:1], 80")
    A("v_lshrrev_b32 v16, 6, v0\nv_and_b32 v17, 63, v0")
    A(f"v_readfirstlane_b32 s{sW}, v16")
    A("s_and_b32 s45, s2, 7\ns_lshr_b32 s46, s2, 3")
    A("s_and_b32 s47, s46, 7")
    A("s_lshr_b32 s48, s46, 3")
    A("s_lshl_b32 s49, s45, 2\ns_add_u32 s49, s49, s48")
    A("s_and_b32 s50, s49, 1\ns_lshr_b32 s51, s49, 1")
    A(f"s_and_b32 s52, s{sW}, 3\ns_lshr_b32 s53, s{sW}, 2")
    A("s_waitcnt lgkmcnt(0)")
    srd(A, sWS, 76, 77, 0x10000000)
    srd(A, sPH, 70, 71, 65536)
    A("s_lshl_b32 s54, s47, 19")
    if WS_XN: A(f"s_add_u32 s54, s54, {WS_XN}")
    A(f"s_add_u32 s{sXsrd}, s76, s54\ns_addc_u32 s{sXsrd+1}, s77, 0\ns_and_b32 s{sXsrd+1}, s{sXsrd+1}, 0xffff")
    A(f"s_mov_b32 s{sXsrd+2}, 0x80000\ns_mov_b32 s{sXsrd+3}, 0x20000")
    A(f"s_lshl_b32 s{sM0X}, s{sW}, 10\ns_add_u32 s{sM0W}, s{sM0X}, {WRING}")
    A(f"v_lshlrev_b32 v{vXo}, 4, v17\nv_add_u32 v{vXo}, s{sM0X}, v{vXo}")
    per = nw * 1024
    A(f"s_mov_b32 s{sXoff}, {(-per) & 0xffffffff}")
    A("v_lshrrev_b32 v18, 3, v17\nv_and_b32 v19, 7, v17")
    A("v_lshrrev_b32 v20, 3, v17\nv_and_b32 v20, 2, v20\nv_xor_b32 v19, v19, v20")
    A("v_lshrrev_b32 v21, 5, v17\nv_lshlrev_b32 v21, 2, v21")
    A("v_lshrrev_b32 v22, 1, v17\nv_and_b32 v22, 8, v22\nv_add_u32 v21, v21, v22")
    A("v_lshrrev_b32 v22, 2, v17\nv_and_b32 v22, 3, v22\nv_add_u32 v21, v21, v22")
    A("v_and_b32 v22, 3, v17\nv_xor_b32 v22, v22, v20")
    A(f"s_mov_b32 s55, {PG}\nv_mul_lo_u32 v21, v21, s55\nv_lshl_add_u32 v21, v22, 4, v21")
    for rho in range(5):
        A(f"s_add_u32 s55, s{sW}, {8*rho}")
        A("s_cmp_ge_u32 s55, 20\ns_cselect_b32 s56, 1, 0")
        A("s_mul_i32 s57, s56, 20\ns_sub_u32 s55, s55, s57")
        A("s_lshr_b32 s57, s55, 2\ns_and_b32 s58, s55, 3")
        S = sWsrd[rho]; lab = f"G1R{rho}"
        A("s_lshl_b32 s59, s51, 1\ns_lshr_b32 s61, s57, 1\ns_add_u32 s59, s59, s61")
        A("s_add_u32 s61, s51, 32\ns_cmp_eq_u32 s50, 0\ns_cselect_b32 s59, s59, s61\ns_lshl_b32 s59, s59, 7")
        A("s_and_b32 s61, s57, 1")
        A(f"s_mov_b32 s62, {PG}\ns_lshl_b32 s63, s58, 3\ns_mov_b32 s78, 0")
        A(f"s_cmp_eq_u32 s57, 4\ns_cbranch_scc0 {lab}_n4")
        A(f"s_cmp_eq_u32 s50, 0\ns_cbranch_scc0 {lab}_gu")
        A(f"s_lshl_b32 s59, s51, 7\ns_mov_b32 s61, 2\ns_mov_b32 s62, {PQ}\ns_branch {lab}_done")
        A(f"{lab}_gu:")
        A("s_lshl_b32 s59, s51, 6\ns_add_u32 s59, s59, 6144\ns_lshr_b32 s61, s58, 1\ns_and_b32 s63, s58, 1\ns_lshl_b32 s63, s63, 4")
        A(f"s_mov_b32 s78, 1\ns_branch {lab}_done")
        A(f"{lab}_n4:")
        A(f"s_cmp_ge_u32 s57, 2\ns_cbranch_scc0 {lab}_done")
        A(f"s_cmp_eq_u32 s50, 1\ns_cbranch_scc0 {lab}_done")
        A("s_sub_u32 s59, s57, 1\ns_lshl_b32 s59, s59, 11\ns_lshl_b32 s61, s51, 7\ns_add_u32 s59, s59, s61")
        A(f"s_mov_b32 s61, 2\ns_mov_b32 s62, {PQ}")
        A(f"{lab}_done:")
        A(f"s_cmp_eq_u32 s61, 0\ns_cselect_b32 s{S}, s72, s74\ns_cselect_b32 s{S+1}, s73, s75")
        A(f"s_cmp_eq_u32 s61, 2\ns_cselect_b32 s{S}, s68, s{S}\ns_cselect_b32 s{S+1}, s69, s{S+1}")
        A(f"s_and_b32 s{S+1}, s{S+1}, 0xffff\ns_lshl_b32 s{S+2}, s62, 10\ns_mov_b32 s{S+3}, 0x20000")
        A(f"s_lshl_b32 s56, s56, 5\ns_add_u32 s56, s56, s63\ns_mul_i32 s56, s56, s62\ns_add_u32 s{sWoff[rho]}, s56, s59")
        A(f"s_lshl_b32 s{sWstr[rho]}, s62, 6\ns_sub_u32 s{sWoff[rho]}, s{sWoff[rho]}, s{sWstr[rho]}")
        A("v_mul_lo_u32 v22, v18, s62")
        A("s_and_b32 s56, s58, 1\ns_lshl_b32 s56, s56, 2\nv_xor_b32 v23, s56, v19\nv_lshl_add_u32 v22, v23, 4, v22")
        A("s_cmp_eq_u32 s78, 1\ns_cselect_b64 vcc, -1, 0")
        A(f"v_cndmask_b32 v{vWo[rho]}, v22, v21, vcc")
    def dma_x(slot, r):
        return [f"s_add_u32 m0, s{sM0X}, {XRING + slot*XS + r*per}",
                f"s_add_u32 s{sXoff}, s{sXoff}, {per}",
                f"buffer_load_dwordx4 v{vXo}, s[{sXsrd}:{sXsrd+3}], s{sXoff} offen lds"]
    def dma_w(ldsoff, rho):
        S = sWsrd[rho]
        return [f"s_add_u32 m0, s{sM0W}, {ldsoff}",
                f"s_add_u32 s{sWoff[rho]}, s{sWoff[rho]}, s{sWstr[rho]}",
                f"buffer_load_dwordx4 v{vWo[rho]}, s[{S}:{S+3}], s{sWoff[rho]} offen lds"]
    def group(sig):
        slot = sig % 4; pb = (sig & ~1) % 4 * WSL
        if sig % 2 == 0: return [dma_x(slot, 0), dma_w(pb, 0), dma_x(slot, 1), dma_w(pb + 8192, 1)]
        return [dma_w(pb + 16384, 2), dma_x(slot, 0), dma_w(pb + 24576, 3), dma_x(slot, 1), dma_w(pb + 32768, 4)]
    def vm_for(s): return 8 if s % 2 == 0 else 9
    def emit_dma(t):
        for x in t: A(x)
    A("v_lshrrev_b32 v18, 4, v17\nv_and_b32 v16, 15, v17\nv_lshlrev_b32 v16, 1, v16\nv_lshl_add_u32 v16, v18, 8, v16")
    A("s_lshl_b32 s55, s51, 1\ns_add_u32 s55, s55, s53\ns_lshl_b32 s55, s55, 11")
    for fb in range(2):
        for j in range(8):
            d = j if j < 4 else 16 + j - 4
            A(f"buffer_load_ushort v{WPT+8*fb+j}, v16, s[{sPH}:{sPH+3}], s55 offen offset:{d*64+fb*32}")
    for sig in range(3):
        for t in group(sig): emit_dma(t)
    A(f"s_lshl_b32 s55, s52, 12\nv_lshlrev_b32 v{vXa}, 4, v17\nv_add_u32 v{vXa}, s55, v{vXa}")
    A("v_lshrrev_b32 v19, 2, v17\nv_and_b32 v19, 3, v19\nv_and_b32 v20, 3, v17")
    A("v_and_b32 v21, 2, v19\nv_and_b32 v22, 1, v18\nv_lshlrev_b32 v22, 2, v22\nv_or_b32 v21, v21, v22")
    A("v_lshrrev_b32 v22, 1, v20\ns_lshl_b32 s55, s53, 2\nv_add_u32 v22, s55, v22")
    A("v_and_b32 v23, 1, v20\nv_lshlrev_b32 v23, 3, v23\nv_lshl_add_u32 v23, v18, 10, v23\nv_lshl_add_u32 v23, v19, 7, v23")
    A(f"v_add_u32 v23, {WRING}, v23")
    for e in range(2):
        A(f"v_add_u32 v16, {2*e}, v22\nv_xor_b32 v16, v16, v21\nv_lshl_add_u32 v{vWn[0][e]}, v16, 4, v23")
        A(f"v_add_u32 v{vWn[1][e]}, {3*WSL}, v{vWn[0][e]}")
    A("v_lshrrev_b32 v22, 1, v20\ns_lshl_b32 s55, s53, 1\nv_add_u32 v22, s55, v22")
    A("v_and_b32 v21, 1, v18\nv_lshlrev_b32 v16, 1, v21\nv_xor_b32 v22, v22, v16")
    A("v_and_b32 v23, 1, v20\nv_lshlrev_b32 v23, 3, v23\nv_lshl_add_u32 v23, v22, 4, v23")
    A("v_lshl_add_u32 v23, v19, 6, v23\nv_lshl_add_u32 v23, v21, 8, v23\nv_lshrrev_b32 v16, 1, v18\nv_lshl_add_u32 v23, v16, 10, v23")
    A(f"v_add_u32 v23, {WRING}, v23")
    A("s_cmp_eq_u32 s50, 1\ns_cselect_b64 vcc, -1, 0")
    for e in range(2):
        A(f"v_add_u32 v16, {2048*e}, v23\nv_cndmask_b32 v{vW4[0][e]}, v{vWn[0][e]}, v16, vcc")
        A(f"v_add_u32 v{vW4[1][e]}, {3*WSL}, v{vW4[0][e]}")
    for i in range(160): A(f"v_mov_b32 v{VACC+i}, 0")
    q = []
    def lds(tag, s): A(s); q.append(tag)
    def wait_for(tags):
        idx = max([i for i, t in enumerate(q) if t in tags], default=-1)
        if idx >= 0:
            n = len(q) - 1 - idx; assert n <= 15
            A(f"s_waitcnt lgkmcnt({n})"); del q[:idx + 1]
    def rd_w(s, j):
        slot = s % 4; hi = 1 if slot == 3 else 0
        jb, e = j >> 1, j & 1
        va = (vW4 if jb == 4 else vWn)[hi][e]
        off = (0 if hi else slot) * WSL + jb * 4096
        r = WF + 4 * ((s * 10 + j) % (D + 1))
        return [(("W", s % 4, j), f"ds_read_b64_tr_b16 v[{r}:{r+1}], v{va} offset:{off}"),
                (("W", s % 4, j), f"ds_read_b64_tr_b16 v[{r+2}:{r+3}], v{va} offset:{off+512}")]
    def rd_x(s, m):
        r = XF + 4 * ((s % 2) * mt + m)
        return (("X", s % 4), f"ds_read_b128 v[{r}:{r+3}], v{vXa} offset:{XRING + (s%4)*XS + m*1024}")
    assert 40 % (D + 1) == 0
    A(f"s_waitcnt vmcnt({vm_for(0)})\ns_barrier")
    stamp(A, prof, 84)
    nx = (mt + D - 1) // D
    carry = group(3)
    px = [rd_x(0, m) for m in range(mt)]
    for j in range(D):
        for x in rd_w(0, j): lds(*x)
        for _ in range(nx):
            if px: lds(*px.pop(0))
        if carry: emit_dma(carry.pop(0))
    if prof: A("s_waitcnt lgkmcnt(0)");
    q_entry = list(q); carry_entry = list(carry)
    A(f"s_mov_b32 s{sCnt}, 8")
    A(".p2align 6\nG1_loop:")
    for s in range(4):
        px = []
        for j in range(10):
            if j == 10 - D:
                A(f"s_waitcnt lgkmcnt(0) vmcnt({vm_for(s+1)})\ns_barrier"); q.clear()
                assert not carry
                carry = group(s + 4); px = [rd_x(s + 1, m) for m in range(mt)]
            else:
                wait_for([("W", s, j)] + ([("X", s)] if j == 0 else []))
            fill = []
            jn = j + D; sn = s + jn // 10; jn %= 10
            for x in rd_w(sn, jn): fill.append(("lds", x))
            for _ in range(nx):
                if px: fill.append(("lds", px.pop(0)))
            if carry: fill.append(("dma", carry.pop(0)))
            wr = WF + 4 * ((s * 10 + j) % (D + 1))
            for m in range(mt):
                xr = XF + 4 * ((s % 2) * mt + m)
                A(f"v_mfma_f32_16x16x32_bf16 {accs(j,m)}, v[{wr}:{wr+3}], v[{xr}:{xr+3}], {accs(j,m)}")
                k = (len(fill) + (mt - m) - 1) // (mt - m)
                for _ in range(k):
                    f = fill.pop(0)
                    if f[0] == "lds": lds(*f[1])
                    else: emit_dma(f[1])
    assert q == q_entry and carry == carry_entry
    A(f"s_sub_u32 s{sCnt}, s{sCnt}, 1\ns_cmp_lg_u32 s{sCnt}, 0\ns_cbranch_scc1 G1_loop")
    stamp(A, prof, 88)
    A("s_waitcnt vmcnt(0) lgkmcnt(0)")
    for i in range(8): A(f"v_lshl_or_b32 v{WPHI+i}, v{WPT+2*i+1}, 16, v{WPT+2*i}")
    sL = 45
    A(f"s_mov_b32 s{sL}, 0x{LOG2E:x}")
    A("v_and_b32 v17, 63, v0\nv_lshlrev_b32 v1, 4, v17")
    A(f"s_lshl_b32 s54, s47, 1\ns_lshr_b32 s55, s52, 1\ns_add_u32 s54, s54, s55\ns_mul_i32 s54, s54, {HA_MT}")
    A(f"s_and_b32 s55, s52, 1\ns_lshl_b32 s55, s55, 12\ns_add_u32 s54, s54, s55\ns_add_u32 s54, s54, {WS_HA}")
    def glu_pair(jbG, sOff):
        for m in range(mt):
            G = [acc(2 * jbG + e, m) + r for e in range(2) for r in range(4)]
            U = [acc(2 * jbG + 2 + e, m) + r for e in range(2) for r in range(4)]
            O = 24 + 4 * m
            glu(A, G, U, [O, O + 1, O + 2, O + 3], 16, mimic)
            A(f"buffer_store_dwordx4 v[{O}:{O+3}], v1, s[{sWS}:{sWS+3}], s{sOff} offen offset:{1024*m}")
    A("s_lshl_b32 s55, s51, 2\ns_lshl_b32 s56, s51, 1\ns_add_u32 s56, s56, 64\ns_cmp_eq_u32 s50, 0\ns_cselect_b32 s55, s55, s56\ns_add_u32 s55, s55, s53")
    A("s_lshl_b32 s55, s55, 13\ns_add_u32 s55, s55, s54")
    A("s_lshl_b32 s57, s51, 1\ns_add_u32 s57, s57, s53")
    A("s_cmp_eq_u32 s50, 1\ns_cbranch_scc1 G1_T2")
    A(f"s_lshl_b32 s58, s57, 18\ns_lshl_b32 s59, s47, 15\ns_add_u32 s58, s58, s59\ns_lshl_b32 s59, s52, 13\ns_add_u32 s58, s58, s59\ns_add_u32 s58, s58, {WS_PQ}")
    A("s_add_u32 s59, s58, 4096")
    for m in range(mt):
        T = 24 if m % 2 == 0 else 2 + 38
        T = [24, 24][m % 2]
        regs = phi_block(A, acc(8, m), acc(9, m), WPHI, T, sL)
        phi_finish(A, regs, sL)
        O = regs[4]; so = 58 if m < 2 else 59
        A(f"buffer_store_dwordx4 v[{O}:{O+3}], v1, s[{sWS}:{sWS+3}], s{so} offen offset:{(m%2)*2048}")
        A(f"buffer_store_dwordx4 v[{O+4}:{O+7}], v1, s[{sWS}:{sWS+3}], s{so} offen offset:{(m%2)*2048+1024}")
    glu_pair(0, 55)
    A("s_add_u32 s55, s55, 16384")
    glu_pair(2, 55)
    A("s_branch G1_end")
    A("G1_T2:")
    A("s_waitcnt vmcnt(0)\ns_barrier")
    PK = 0; VV = 65536
    A("v_and_b32 v2, 15, v17\nv_lshrrev_b32 v3, 4, v17")
    A("v_and_b32 v4, 6, v2")
    A("v_lshrrev_b32 v5, 1, v3\nv_xor_b32 v5, v5, v4")
    A("v_and_b32 v6, 1, v3\nv_lshlrev_b32 v6, 3, v6")
    A("s_lshl_b32 s58, s53, 15\ns_lshl_b32 s59, s52, 13\ns_add_u32 s58, s58, s59")
    A("v_lshl_add_u32 v7, v2, 7, v6\nv_add_u32 v7, s58, v7")
    for c in range(4):
        A(f"v_xor_b32 v8, {2*c}, v5\nv_lshl_add_u32 v{9+c}, v8, 4, v7")
    A("v_lshrrev_b32 v8, 1, v2\nv_and_b32 v8, 2, v8\nv_lshrrev_b32 v5, 1, v3\nv_xor_b32 v5, v5, v8")
    A(f"s_lshl_b32 s58, s53, 14\ns_lshl_b32 s59, s52, 12\ns_add_u32 s58, s58, s59\ns_add_u32 s58, s58, {VV}")
    A("v_lshl_add_u32 v7, v2, 6, v6\nv_add_u32 v7, s58, v7")
    for e in range(2):
        A(f"v_xor_b32 v8, {2*e}, v5\nv_lshl_add_u32 v{13+e}, v8, 4, v7")
    for m in range(mt):
        regs = phi_block(A, acc(4, m), acc(5, m), WPHI, 24, sL)
        for e in range(2):
            a = acc(6 + e, m)
            A(f"v_cvt_pk_bf16_f32 v{64+2*e}, v{a}, v{a+1}\nv_cvt_pk_bf16_f32 v{65+2*e}, v{a+2}, v{a+3}")
            A(f"ds_write_b64 v{13+e}, v[{64+2*e}:{65+2*e}] offset:{1024*m}")
        phi_finish(A, regs, sL)
        O = regs[4]
        for c in range(4):
            A(f"ds_write_b64 v{9+c}, v[{O+2*c}:{O+2*c+1}] offset:{2048*m}")
    A("s_waitcnt lgkmcnt(0)\ns_barrier")
    A("v_lshrrev_b32 v4, 2, v17\nv_and_b32 v4, 3, v4\nv_and_b32 v5, 3, v17")
    A("v_lshl_add_u32 v6, v3, 2, v4")
    A("v_and_b32 v7, 6, v6")
    A("v_lshrrev_b32 v8, 1, v5\ns_lshl_b32 s58, s52, 1\nv_add_u32 v8, s58, v8\nv_xor_b32 v8, v8, v7")
    A("v_and_b32 v9, 1, v5\nv_lshlrev_b32 v9, 3, v9")
    A("v_lshl_add_u32 v10, v6, 7, v9\nv_lshl_add_u32 v10, v8, 4, v10\ns_lshl_b32 s58, s53, 15\nv_add_u32 v10, s58, v10")
    A("v_lshrrev_b32 v7, 1, v6\nv_and_b32 v7, 2, v7\nv_lshrrev_b32 v8, 1, v5\nv_xor_b32 v8, v8, v7")
    A(f"v_lshl_add_u32 v11, v6, 6, v9\ns_lshl_b32 s58, s53, 14\ns_add_u32 s58, s58, {VV}\nv_add_u32 v11, s58, v11")
    A("v_xor_b32 v7, 2, v8\nv_lshl_add_u32 v12, v7, 4, v11\nv_lshl_add_u32 v11, v8, 4, v11")
    for i in range(4): A(f"v_mov_b32 v{20+i}, 0x3f803f80")
    KV = 24
    for i in range(12): A(f"v_mov_b32 v{KV+i}, 0")
    FR = 36
    def kv_reads(kap):
        b = FR + 12 * (kap % 3)
        for qq in range(2):
            A(f"ds_read_b64_tr_b16 v[{b+2*qq}:{b+2*qq+1}], v10 offset:{kap*4096+qq*2048}")
        for db in range(2):
            for qq in range(2):
                A(f"ds_read_b64_tr_b16 v[{b+4+4*db+2*qq}:{b+4+4*db+2*qq+1}], v{11+db} offset:{kap*2048+qq*1024}")
    kv_reads(0); kv_reads(1)
    for kap in range(8):
        if kap + 2 < 8: kv_reads(kap + 2)
        left = min(2, 7 - kap) * 6
        A(f"s_waitcnt lgkmcnt({left})")
        b = FR + 12 * (kap % 3)
        A(f"v_mfma_f32_16x16x32_bf16 v[{KV}:{KV+3}], v[{b}:{b+3}], v[{b+4}:{b+7}], v[{KV}:{KV+3}]")
        A(f"v_mfma_f32_16x16x32_bf16 v[{KV+4}:{KV+7}], v[{b}:{b+3}], v[{b+8}:{b+11}], v[{KV+4}:{KV+7}]")
        A(f"v_mfma_f32_16x16x32_bf16 v[{KV+8}:{KV+11}], v[{b}:{b+3}], v[20:23], v[{KV+8}:{KV+11}]")
    A(f"s_lshl_b32 s58, s57, 3\ns_add_u32 s58, s58, s47\ns_lshl_b32 s58, s58, 14\ns_add_u32 s58, s58, {WS_KV}")
    A("s_lshl_b32 s59, s52, 6\ns_add_u32 s59, s59, s58\ns_add_u32 s59, s59, 8192")
    A("s_lshl_b32 s56, s52, 11\ns_add_u32 s58, s58, s56")
    A("v_lshlrev_b32 v2, 4, v3")
    A(f"buffer_store_dwordx4 v[{KV}:{KV+3}], v1, s[{sWS}:{sWS+3}], s58 offen")
    A(f"buffer_store_dwordx4 v[{KV+4}:{KV+7}], v1, s[{sWS}:{sWS+3}], s58 offen offset:1024")
    A(f"buffer_store_dwordx4 v[{KV+8}:{KV+11}], v2, s[{sWS}:{sWS+3}], s59 offen")
    def glu_pair2(jbG, sOff):
        for m in range(mt):
            G = [acc(2 * jbG + e, m) + r for e in range(2) for r in range(4)]
            U = [acc(2 * jbG + 2 + e, m) + r for e in range(2) for r in range(4)]
            O = 40 + 4 * m
            glu(A, G, U, [O, O + 1, O + 2, O + 3], 16, mimic)
            A(f"buffer_store_dwordx4 v[{O}:{O+3}], v1, s[{sWS}:{sWS+3}], s{sOff} offen offset:{1024*m}")
    glu_pair2(0, 55)
    A("s_add_u32 s55, s51, 96\ns_lshl_b32 s55, s55, 13\ns_add_u32 s55, s55, s54\ns_lshl_b32 s56, s53, 3\ns_add_u32 s55, s55, s56")
    for mp in range(0, mt, 2):
        G = [acc(8, mp + i) + r for i in range(2) for r in range(4)]
        U = [acc(9, mp + i) + r for i in range(2) for r in range(4)]
        O = 56 + 2 * mp
        glu(A, G, U, [O, O + 1, O + 2, O + 3], 16, mimic)
        for i in range(2):
            A(f"buffer_store_dwordx2 v[{O+2*i}:{O+2*i+1}], v1, s[{sWS}:{sWS+3}], s55 offen offset:{1024*(mp+i)}")
    A("G1_end:")
    if prof:
        A("s_waitcnt vmcnt(0)")
        stamp(A, prof, 96)
        stamp_store(A, prof, 1, sWS, sW, [80, 84, 88, 96], 2)
    A("G1_done:\ns_endpgm")
    return A.finish(), kd(name, 256), f"; @launch kernel={name} grid=(256,1,1) block=(512,1,1) lds=147456"

def gen_g2(prof=False, R=6):
    A = Asm(); name = "g2_kernel"; head(A, name)
    X2 = 16384; W2 = 8192; WR = R * X2; SCR = R * (X2 + W2)
    vXa = [2, 3]; vWa = [4, 5]; vXo = 6; vWo = 7; vPoll = 8; vOut = 9; XR = 184
    FS = [24, 48]; ACC = 72
    sW = 3; sXsrd = 8; sWsrd = 12; sWS = 16; sDB = 20; sXin = 24; sOUT = 28
    sXoff = 32; sWoff = 33; sM0X = 34; sM0W = 35; sCnt = 36; sWinit = 37; sRbo = 38; sRbs = 39
    A("s_cmp_ge_u32 s2, 256\ns_cbranch_scc1 G2_done")
    stamp(A, prof, 80)
    A("s_load_dwordx2 s[60:61], s[0:1], 0")
    A("s_load_dwordx2 s[62:63], s[0:1], 24")
    A("s_load_dwordx4 s[64:67], s[0:1], 56")
    A("s_load_dwordx4 s[68:71], s[0:1], 72")
    A("v_lshrrev_b32 v16, 6, v0\nv_and_b32 v1, 63, v0")
    A(f"v_readfirstlane_b32 s{sW}, v16")
    A("s_and_b32 s40, s2, 7\ns_lshr_b32 s41, s2, 3")
    A("s_lshr_b32 s42, s40, 1\ns_lshl_b32 s42, s42, 2\ns_and_b32 s43, s41, 3\ns_add_u32 s42, s42, s43")
    A("s_and_b32 s43, s40, 1\ns_lshl_b32 s43, s43, 3\ns_lshr_b32 s44, s41, 2\ns_add_u32 s43, s43, s44")
    A(f"s_and_b32 s45, s{sW}, 1\ns_lshr_b32 s46, s{sW}, 1\ns_and_b32 s46, s46, 1\ns_lshr_b32 s47, s{sW}, 2")
    A("s_and_b32 s48, s2, 31\ns_lshr_b32 s49, s2, 5")
    A(f"s_lshr_b32 s{sRbo}, s42, 1\ns_lshl_b32 s{sRbo}, s{sRbo}, 2")
    A(f"s_lshl_b32 s{sRbs}, s49, 2")
    A("v_lshlrev_b32 v10, 4, v1")
    A("v_lshrrev_b32 v18, 4, v1\nv_lshlrev_b32 v11, 4, v18")
    A("s_waitcnt lgkmcnt(0)")
    srd(A, sWS, 70, 71, 0x10000000); srd(A, sDB, 68, 69, 256); srd(A, sXin, 60, 61, 0x400000); srd(A, sOUT, 66, 67, 0x400000)
    srd(A, sWsrd, 64, 65, 3584 * 2048)
    A(f"s_mul_i32 s50, s42, {HA_MT}\ns_add_u32 s50, s50, {WS_HA}")
    A(f"s_add_u32 s{sXsrd}, s70, s50\ns_addc_u32 s{sXsrd+1}, s71, 0\ns_and_b32 s{sXsrd+1}, s{sXsrd+1}, 0xffff")
    A(f"s_mov_b32 s{sXsrd+2}, {HA_MT}\ns_mov_b32 s{sXsrd+3}, 0x20000")
    KVL = 104; ZL = 136; PQL = 168
    A(f"s_lshl_b32 s50, s48, 17\ns_add_u32 s50, s50, {WS_KV}")
    A(f"s_lshr_b32 s51, s{sW}, 1\ns_lshl_b32 s51, s51, 6\ns_add_u32 s51, s51, s50\ns_add_u32 s51, s51, 8192")
    A(f"s_lshl_b32 s52, s{sW}, 10\ns_add_u32 s50, s50, s52")
    for p in range(8):
        A(f"buffer_load_dwordx4 v[{KVL+4*p}:{KVL+4*p+3}], v10, s[{sWS}:{sWS+3}], s50 offen")
        A(f"buffer_load_dwordx4 v[{ZL+4*p}:{ZL+4*p+3}], v11, s[{sWS}:{sWS+3}], s51 offen")
        if p < 7: A("s_add_u32 s50, s50, 16384\ns_add_u32 s51, s51, 16384")
    A(f"s_lshl_b32 s50, s48, 18\ns_lshl_b32 s51, s49, 15\ns_add_u32 s50, s50, s51\ns_lshl_b32 s51, s{sW}, 12\ns_add_u32 s50, s50, s51\ns_add_u32 s50, s50, {WS_PQ}")
    for i in range(4):
        A(f"buffer_load_dwordx4 v[{PQL+4*i}:{PQL+4*i+3}], v10, s[{sWS}:{sWS+3}], s50 offen offset:{1024*i}")
    A(f"s_lshl_b32 s{sM0X}, s{sW}, 10\ns_add_u32 s{sM0W}, s{sM0X}, {WR}")
    A(f"v_add_u32 v{vXo}, s{sM0X}, v10")
    A(f"s_mov_b32 s{sXoff}, {(-8192) & 0xffffffff}")
    A("v_lshrrev_b32 v16, 3, v1\nv_and_b32 v17, 7, v1\nv_lshrrev_b32 v19, 3, v1\nv_and_b32 v19, 6, v19\nv_xor_b32 v17, v17, v19")
    A(f"v_lshlrev_b32 v{vWo}, 11, v16\nv_lshl_add_u32 v{vWo}, v17, 4, v{vWo}")
    A(f"s_lshl_b32 s{sWinit}, s{sW}, 14\ns_lshl_b32 s50, s43, 7\ns_add_u32 s{sWinit}, s{sWinit}, s50\ns_sub_u32 s{sWinit}, s{sWinit}, 131072")
    A(f"s_mov_b32 s{sWoff}, s{sWinit}")
    def group(sig):
        slot = sig % R
        g = []
        for r in range(2):
            g.append([f"s_add_u32 m0, s{sM0X}, {slot*X2 + r*8192}", f"s_add_u32 s{sXoff}, s{sXoff}, 8192",
                      f"buffer_load_dwordx4 v{vXo}, s[{sXsrd}:{sXsrd+3}], s{sXoff} offen sc1 lds"])
        g.insert(1, [f"s_add_u32 m0, s{sM0W}, {slot*W2}", f"s_add_u32 s{sWoff}, s{sWoff}, 131072",
                     f"buffer_load_dwordx4 v{vWo}, s[{sWsrd}:{sWsrd+3}], s{sWoff} offen lds"])
        return g
    for sig in range(R - 1):
        for t in group(sig):
            for x in t: A(x)
    A("v_and_b32 v17, 7, v1")
    A(f"v_lshlrev_b32 v{vOut}, 11, v16\nv_lshl_add_u32 v{vOut}, v17, 4, v{vOut}")
    A(f"s_lshl_b32 s54, s42, 18\ns_lshl_b32 s55, s{sW}, 15\ns_add_u32 s54, s54, s55\ns_lshl_b32 s55, s43, 7\ns_add_u32 s54, s54, s55\ns_add_u32 s55, s54, 16384")
    A(f"buffer_load_dwordx4 v[{XR}:{XR+3}], v{vOut}, s[{sXin}:{sXin+3}], s54 offen")
    A(f"buffer_load_dwordx4 v[{XR+4}:{XR+7}], v{vOut}, s[{sXin}:{sXin+3}], s55 offen")
    ND = 3 * (R - 1) + 2
    A(f"s_lshl_b32 s50, s47, 13\ns_lshl_b32 s51, s45, 12\ns_add_u32 s50, s50, s51")
    A(f"v_add_u32 v{vXa[0]}, s50, v10\nv_add_u32 v{vXa[1]}, 65536, v{vXa[0]}")
    A("v_lshrrev_b32 v19, 2, v1\nv_and_b32 v19, 3, v19\nv_and_b32 v20, 3, v1")
    A("v_lshl_add_u32 v21, v18, 2, v19\nv_and_b32 v22, 6, v21")
    A("v_lshrrev_b32 v23, 1, v20\ns_lshl_b32 s50, s46, 2\nv_add_u32 v23, s50, v23")
    A("v_and_b32 v17, 1, v20\nv_lshlrev_b32 v17, 3, v17\nv_lshl_add_u32 v17, v21, 7, v17")
    A(f"s_lshl_b32 s50, s47, 12\ns_add_u32 s50, s50, {WR}\nv_add_u32 v17, s50, v17")
    for e in range(2):
        A(f"v_add_u32 v16, {2*e}, v23\nv_xor_b32 v16, v16, v22\nv_lshl_add_u32 v{vWa[e]}, v16, 4, v17")
    for i in range(32): A(f"v_mov_b32 v{ACC+i}, 0")
    A("s_waitcnt vmcnt(0)")
    for p in range(1, 8):
        for i in range(4):
            A(f"v_add_f32 v{KVL+i}, v{KVL+i}, v{KVL+4*p+i}\nv_add_f32 v{ZL+i}, v{ZL+i}, v{ZL+4*p+i}")
    A(f"v_cvt_pk_bf16_f32 v{KVL+4}, v{KVL}, v{KVL+1}\nv_cvt_pk_bf16_f32 v{KVL+5}, v{KVL+2}, v{KVL+3}")
    A(f"v_cvt_pk_bf16_f32 v{KVL+6}, v{ZL}, v{ZL+1}\nv_cvt_pk_bf16_f32 v{KVL+7}, v{ZL+2}, v{ZL+3}")
    A(f"s_mul_i32 s50, s47, 3072\ns_lshl_b32 s51, s46, 3\ns_add_u32 s50, s50, s51\ns_add_u32 s50, s50, {SCR}")
    A("v_add_u32 v16, s50, v10\ns_lshl_b32 s51, s45, 10\nv_add_u32 v17, s51, v16")
    A(f"ds_write_b64 v17, v[{KVL+4}:{KVL+5}]\nds_write_b64 v16, v[{KVL+6}:{KVL+7}] offset:2048")
    A("s_waitcnt lgkmcnt(0)\ns_barrier")
    A(f"v_add_u32 v16, {SCR}, v10")
    AF = KVL + 8
    for f in range(6): A(f"ds_read_b128 v[{AF+4*f}:{AF+4*f+3}], v16 offset:{1024*f}")
    A("s_waitcnt lgkmcnt(0)")
    NU = ZL
    for i in range(2):
        for db in range(3):
            d = NU + 12 * i + 4 * db
            A(f"v_mfma_f32_16x16x32_bf16 v[{d}:{d+3}], v[{AF+4*db}:{AF+4*db+3}], v[{PQL+8*i}:{PQL+8*i+3}], 0")
    for i in range(2):
        for db in range(3):
            d = NU + 12 * i + 4 * db
            A(f"v_mfma_f32_16x16x32_bf16 v[{d}:{d+3}], v[{AF+12+4*db}:{AF+12+4*db+3}], v[{PQL+8*i+4}:{PQL+8*i+7}], v[{d}:{d+3}]")
    A(f"s_lshl_b32 s50, s49, 1\ns_add_u32 s50, s50, s47\ns_mul_i32 s50, s50, {HA_MT}\ns_add_u32 s51, s48, 112\ns_lshl_b32 s51, s51, 13\ns_add_u32 s50, s50, s51")
    A(f"s_and_b32 s51, s{sW}, 3\ns_lshl_b32 s51, s51, 11\ns_add_u32 s50, s50, s51\ns_add_u32 s50, s50, {WS_HA}")
    for i in range(2):
        d = NU + 12 * i
        for k in range(4): rnd_pair(A, d + 2 * k, d + 2 * k + 1, 16 + k)
        A(f"v_cvt_pk_bf16_f32 v20, v{d+8}, v{d+8}\nv_lshlrev_b32 v{d+8}, 16, v20\nv_add_f32 v{d+8}, 0x358637bd, v{d+8}")
        A(f"v_cvt_pk_bf16_f32 v20, v{d+8}, v{d+8}\nv_lshlrev_b32 v{d+8}, 16, v20\nv_rcp_f32 v{d+9}, v{d+8}")
        A(f"v_fma_f32 v{d+10}, -v{d+8}, v{d+9}, 1.0\nv_fma_f32 v{d+9}, v{d+9}, v{d+10}, v{d+9}")
        for k in range(8): A(f"v_mul_f32 v{d+k}, v{d+k}, v{d+9}")
        o = AF + 4 * i
        for k in range(4): A(f"v_cvt_pk_bf16_f32 v{o+k}, v{d+2*k}, v{d+2*k+1}")
        A(f"buffer_store_dwordx4 v[{o}:{o+3}], v10, s[{sWS}:{sWS+3}], s50 offen offset:{1024*i} sc1")
    def reads(s):
        slot = s % R; F = FS[s % 2]; out = []
        hi = 1 if slot >= 4 else 0
        for e in range(2):
            for qq in range(2):
                out.append(f"ds_read_b64_tr_b16 v[{F+16+4*e+2*qq}:{F+16+4*e+2*qq+1}], v{vWa[e]} offset:{slot*W2 + qq*2048}")
        xs = [f"ds_read_b128 v[{F+4*m}:{F+4*m+3}], v{vXa[hi]} offset:{(slot-4*hi)*X2 + m*1024}" for m in range(4)]
        return [out[0], out[1], xs[0], xs[1], xs[2], xs[3], out[2], out[3]]
    VM = 3 * (R - 2)
    A(f"v_mov_b32 v{vPoll}, 0\ns_waitcnt vmcnt(0)\ns_barrier")
    stamp(A, prof, 84)
    for x in reads(0): A(x)
    for t in group(R - 1):
        for x in t: A(x)
    NIT = 72 // R
    A(f"s_mov_b32 s{sCnt}, {NIT}")
    sw_s = 56 - R
    poll_s = sw_s - 8
    A(".p2align 6\nG2_loop:")
    for s in range(R):
        A(f"s_waitcnt lgkmcnt(0) vmcnt({VM})\ns_barrier")
        if s == 0:
            A(f"s_cmp_eq_u32 s{sCnt}, {NIT}\ns_cbranch_scc0 G2_nosig\ns_cmp_eq_u32 s{sW}, 0\ns_cbranch_scc0 G2_nosig")
            A(f"v_mov_b32 v16, 1\nv_mov_b32 v17, 0\ns_mov_b64 exec, 1")
            A(f"buffer_atomic_add v16, v17, s[{sDB}:{sDB+3}], s{sRbs} offen")
            A("s_mov_b64 exec, -1\nG2_nosig:")
        if s == poll_s % R:
            A(f"s_cmp_eq_u32 s{sCnt}, {NIT - poll_s // R}\ns_cbranch_scc0 G2_nopoll")
            A(f"v_mov_b32 v17, 0\nbuffer_load_dword v{vPoll}, v17, s[{sDB}:{sDB+3}], s{sRbo} offen sc1")
            A("G2_nopoll:")
        if s == sw_s % R:
            A(f"s_cmp_eq_u32 s{sCnt}, {NIT - sw_s // R}\ns_cbranch_scc0 G2_nosw")
            A("s_mov_b32 s51, 0\nG2_chk:")
            A(f"v_readfirstlane_b32 s50, v{vPoll}\ns_cmp_ge_u32 s50, 32\ns_cbranch_scc1 G2_ok")
            A("s_add_u32 s51, s51, 1\ns_cmp_ge_u32 s51, 0x100000\ns_cbranch_scc1 G2_ok")
            A(f"s_sleep 2\nv_mov_b32 v17, 0\nbuffer_load_dword v{vPoll}, v17, s[{sDB}:{sDB+3}], s{sRbo} offen sc1\ns_waitcnt vmcnt(0)\ns_branch G2_chk")
            A("G2_ok:")
            srd(A, sWsrd, 62, 63, 1024 * 2048)
            A(f"s_mov_b32 s{sWoff}, s{sWinit}")
            A("G2_nosw:")
        fill = [[x] for x in reads(s + 1)]
        g = group(s + R)
        fill = fill[:4] + [g[0]] + fill[4:] + [g[1], g[2]]
        F = FS[s % 2]
        k = 0
        for e in range(2):
            for m in range(4):
                a = ACC + 4 * (4 * e + m)
                A(f"v_mfma_f32_16x16x32_bf16 v[{a}:{a+3}], v[{F+16+4*e}:{F+16+4*e+3}], v[{F+4*m}:{F+4*m+3}], v[{a}:{a+3}]")
                for _ in range(2):
                    if fill:
                        for x in fill.pop(0): A(x)
        assert not fill
    A(f"s_sub_u32 s{sCnt}, s{sCnt}, 1\ns_cmp_lg_u32 s{sCnt}, 0\ns_cbranch_scc1 G2_loop")
    stamp(A, prof, 88)
    A("s_waitcnt vmcnt(0) lgkmcnt(0)\ns_barrier")
    EP = 272; EK = 128 * EP
    A("v_and_b32 v16, 15, v1")
    A(f"s_mul_i32 s50, s47, {EK}\ns_mul_i32 s51, s45, {64*EP}\ns_add_u32 s50, s50, s51\ns_lshl_b32 s51, s46, 7\ns_add_u32 s50, s50, s51")
    A(f"v_mul_u32_u24 v16, {EP}, v16\nv_add_u32 v16, v16, v11\nv_add_u32 v16, s50, v16")
    for e in range(2):
        for m in range(4):
            a = ACC + 4 * (4 * e + m)
            A(f"ds_write_b128 v16, v[{a}:{a+3}] offset:{m*16*EP + e*64}")
    A("v_lshrrev_b32 v17, 3, v1\nv_and_b32 v18, 7, v1")
    A(f"s_lshl_b32 s50, s{sW}, 4\nv_add_u32 v17, s50, v17\nv_mul_u32_u24 v17, {EP}, v17\nv_lshl_add_u32 v17, v18, 5, v17")
    A("s_waitcnt lgkmcnt(0)\ns_barrier")
    E = 24
    for i in range(2):
        for kg in range(2):
            for hh in range(2):
                r = E + 16 * i + 8 * kg + 4 * hh
                A(f"ds_read_b128 v[{r}:{r+3}], v17 offset:{kg*EK + i*8*EP + hh*16}")
    for i in range(2):
        A(f"s_waitcnt lgkmcnt({4*(1-i)})")
        r = E + 16 * i
        for k in range(8): A(f"v_add_f32 v{r+k}, v{r+k}, v{r+8+k}")
        for k in range(4):
            x = XR + 4 * i + k
            A(f"v_lshlrev_b32 v{r+8+2*k}, 16, v{x}\nv_and_b32 v{r+9+2*k}, 0xffff0000, v{x}")
        for k in range(8): A(f"v_add_f32 v{r+k}, v{r+k}, v{r+8+k}")
        o = 56 + 4 * i
        for k in range(4): A(f"v_cvt_pk_bf16_f32 v{o+k}, v{r+2*k}, v{r+2*k+1}")
        A(f"buffer_store_dwordx4 v[{o}:{o+3}], v{vOut}, s[{sOUT}:{sOUT+3}], s{54+i} offen")
    if prof:
        A("s_waitcnt vmcnt(0)")
        stamp(A, prof, 96)
        stamp_store(A, prof, 2, sWS, sW, [80, 84, 88, 96], 64)
    A("G2_done:\ns_endpgm")
    return A.finish(), kd(name, 192), f"; @launch kernel={name} grid=(256,1,1) block=(512,1,1) lds={SCR + 6144}"

def build(prof=False, **kw):
    ks = [gen_ln(prof), gen_g1(prof=prof, mimic=kw.get("mimic", True)), gen_g2(prof=prof)]
    out = ["; generated by gen/gen.py : LN -> GEMM1(+GLU/feature-map epilogues) -> o + GEMM2"]
    out += [k[2] for k in ks]
    out += ['.amdgcn_target "amdgcn-amd-amdhsa--gfx950"', ".text"]
    for body, kdesc, _ in ks:
        out += body; out.append(kdesc)
    return "\n".join(out) + "\n"

if __name__ == "__main__":
    open(f"cdna_kernels/{NAME}.s", "w").write(build())
    open("full_prof.s", "w").write(build(prof=True))
```
